```python
import torch

def _softmax(x, axis=-1):
    return torch.softmax(x, dim=axis)
def _gelu(x):
    return torch.nn.functional.gelu(x, approximate="tanh")
def _silu(x):
    return torch.nn.functional.silu(x)
def _sigmoid(x):
    return torch.sigmoid(x)
def _layernorm(x, axis=-1, eps=1e-5):
    m = x.mean(dim=axis, keepdim=True)
    v = x.var(dim=axis, keepdim=True, unbiased=False)
    return (x - m) / torch.sqrt(v + eps)
def _scatter_add(tgt, idx, src, axis=0):
    return tgt.clone().index_add_(axis, idx, src)
def _segment_sum(src, seg, n):
    out = torch.zeros((n,) + src.shape[1:], dtype=src.dtype)
    return out.index_add_(0, seg, src)
def _pad(x, pw):
    flat = tuple(v for pair in reversed(pw) for v in pair)
    return torch.nn.functional.pad(x, flat)

kernel_name = 'standalone__normalfloat_lut_nf4__prompt'

def setup_inputs():

    _w = (lambda a: (lambda t: t.to(torch.bfloat16) if t.is_floating_point() else t)(torch.as_tensor(a)))
    B, S, D, F = 1, 2048, 576, 4608
    G = -1 if -1 > 0 else D
    D = (D // G) * G
    ng = D // G
    qw = torch.randint(0, 16, (D, F)).to(torch.int64)
    return {
        "x": _w((lambda *s: torch.randn(*s, dtype=torch.bfloat16) * 0.05)(B, S, D)),
        "qw": _w(qw),
        "absmax": _w(torch.abs((lambda *s: torch.randn(*s, dtype=torch.bfloat16) * 0.05)(ng, F)).to(float) + 0.01),
    }

def reference(x, qw, absmax):
    NF4 = torch.as_tensor([
        -1.0, -0.6961928009986877, -0.5250730514526367, -0.39491748809814453,
        -0.28444138169288635, -0.18477343022823334, -0.09105003625154495, 0.0,
        0.07958029955625534, 0.16093020141124725, 0.24611230194568634,
        0.33791524171829224, 0.44070982933044434, 0.5626170039176941,
        0.7229568362236023, 1.0,
    ])
    D, F = qw.shape[0], qw.shape[1]
    ng = absmax.shape[0]
    G = D // ng
    w = (lambda x, dt: x.to(dt))(NF4[qw], x.dtype)
    s = (lambda x, n, axis: torch.repeat_interleave(x, n, dim=axis))(absmax, G, axis=0)
    w = w * s
    return torch.einsum("bsd,df->bsf", x, w)
```

```python
import struct, sys, os

NAME = "standalone__normalfloat_lut_nf4__prompt"
NF4 = [-1.0, -0.6961928009986877, -0.5250730514526367, -0.39491748809814453,
       -0.28444138169288635, -0.18477343022823334, -0.09105003625154495, 0.0,
       0.07958029955625534, 0.16093020141124725, 0.24611230194568634,
       0.33791524171829224, 0.44070982933044434, 0.5626170039176941,
       0.7229568362236023, 1.0]

def f32bits(x): return struct.unpack('<I', struct.pack('<f', x))[0]
def bf16_rne(x):
    u = f32bits(x)
    return ((u + 0x7fff + ((u >> 16) & 1)) >> 16) & 0xffff
BF = [bf16_rne(v) for v in NF4]

def perm_byte(tab8, sel):
    if sel >= 13: return 0xff
    if sel == 12: return 0
    if sel >= 8:
        return 0xff if tab8[2*(sel-8)+1] & 0x80 else 0
    return tab8[sel]

def make_tables(V):
    T = [0]*8; U = [0]*8
    for _ in range(6):
        T = [V[q] ^ perm_byte(U, q+8) for q in range(8)]
        U = [V[q+8] ^ perm_byte(T, q+8) for q in range(8)]
    for q in range(16):
        assert perm_byte(T, q) ^ perm_byte(U, q ^ 8) == V[q]
    w = lambda b: b[0] | b[1] << 8 | b[2] << 16 | b[3] << 24
    return [w(T[0:4]), w(T[4:8]), w(U[0:4]), w(U[4:8])]
TL = make_tables([b & 0xff for b in BF])
TH = make_tables([b >> 8 for b in BF])

OPT = dict(nostore=0, nomfma=0, noq=0, nox=0, nodeq=0)
for a in sys.argv[2:]:
    k, v = a.split('='); OPT[k] = int(v)

XST = 32768; WST = 20480; WBASE = 3*XST; LDS = WBASE + 2*WST
out = []
def e(s): out.append("    " + s)
def lab(s): out.append(s + ":")

hdr = f"""; NF4 LUT dequant + bf16 GEMM, M=2048 N=4608 K=576 (generated by dev/gen1.py)
; @launch grid=(256,1,1) block=(512,1,1) lds={LDS}
.amdgcn_target "amdgcn-amd-amdhsa--gfx950"
.text
.globl {NAME}_kernel
.p2align 8
.type {NAME}_kernel,@function
{NAME}_kernel:"""
out.append(hdr)
e("s_cmp_ge_u32 s2, 256")
e("s_cbranch_scc1 L_end")
e("s_load_dwordx4 s[20:23], s[0:1], 0")
e("s_load_dwordx4 s[24:27], s[0:1], 16")
e("v_lshrrev_b32 v1, 6, v0")
e("s_and_b32 s28, s2, 7")
e("v_readfirstlane_b32 s3, v1")
e("s_lshr_b32 s29, s2, 3")
e("s_and_b32 s30, s29, 7")
e("s_lshr_b32 s29, s29, 3")
e("s_and_b32 s31, s29, 1")
e("s_lshr_b32 s29, s29, 1")
e("s_lshl_b32 s28, s28, 1")
e("s_add_u32 s28, s28, s29")
e("s_mul_i32 s28, s28, 288")
e("s_mul_i32 s29, s31, 160")
e("s_add_u32 s32, s28, s29")
e("s_add_u32 s33, s28, 128")
e("s_lshl_b32 s30, s30, 8")
e("v_and_b32 v0, 63, v0")
e("v_and_b32 v2, 31, v0")
e("v_lshrrev_b32 v3, 5, v0")
e("s_mov_b32 s6, %d" % (2048*576*2))
e("s_mov_b32 s7, 0x20000")
e("s_mov_b32 s10, %d" % (576*4608*4))
e("s_mov_b32 s11, 0x20000")
e("s_mov_b32 s14, %d" % (2048*4608*2))
e("s_mov_b32 s15, 0x20000")
e("s_mov_b32 s18, %d" % (4608*2))
e("s_mov_b32 s19, 0x20000")
e("s_cmp_ge_u32 s3, 4")
e("s_cbranch_scc0 L_consumer")

vQm, vQe, vW = 4, 5, 6
vX = [8, 9, 10, 11]
vTL = [12, 13]; vTH = [14, 15]
sTL = [52, 53]; sTH = [54, 55]
sSel0, sSel1, sX8 = 56, 57, 58
Q = [64, 104]
TMP = 16
OUTR = 48
e("s_sub_u32 s3, s3, 4")
e("s_lshl_b32 s34, s3, 1")
e("v_add_u32 v7, s34, v3")
e("s_mov_b32 s35, %d" % (8*18432))
e("v_mul_lo_u32 v4, v7, s35")
e("s_lshl_b32 s36, s33, 2")
e("v_lshl_add_u32 v5, v2, 2, v4")
e("v_add_u32 v5, s36, v5")
e("s_lshl_b32 s36, s32, 2")
e("v_lshl_add_u32 v4, v2, 4, v4")
e("v_add_u32 v4, s36, v4")
for i in range(1, 8):
    e("s_mov_b32 s%d, %d" % (40+i, i*18432))
e("s_waitcnt lgkmcnt(0)")
e("s_mov_b32 s8, s22")
e("s_mov_b32 s9, s23")
e("s_mov_b32 s4, s20")
e("s_mov_b32 s5, s21")
def issueQ(b):
    if OPT['noq']:
        return
    for i in range(8):
        so = "0" if i == 0 else "s%d" % (40+i)
        e("buffer_load_dwordx4 v[%d:%d], v%d, s[8:11], %s offen" % (Q[b]+4*i, Q[b]+4*i+3, vQm, so))
    for i in range(8):
        so = "0" if i == 0 else "s%d" % (40+i)
        e("buffer_load_dword v%d, v%d, s[8:11], %s offen" % (Q[b]+32+i, vQe, so))
    e("v_add_u32 v%d, %d, v%d" % (vQm, 64*18432, vQm))
    e("v_add_u32 v%d, %d, v%d" % (vQe, 64*18432, vQe))
issueQ(0)
e("v_mul_u32_u24 v6, %d, v7" % 2560)
e("v_lshl_add_u32 v6, v2, 4, v6")
e("v_add_u32 v6, %d, v6" % WBASE)
e("v_lshrrev_b32 v16, 3, v0")
e("s_lshl_b32 s34, s3, 6")
e("s_add_u32 s34, s34, s30")
e("v_add_u32 v16, s34, v16")
e("v_mul_u32_u24 v16, 1152, v16")
e("v_and_b32 v17, 7, v0")
e("v_lshrrev_b32 v18, 4, v0")
e("v_xor_b32 v17, v17, v18")
e("v_lshl_add_u32 v8, v17, 4, v16")
e("v_xor_b32 v17, 4, v17")
e("v_lshl_add_u32 v9, v17, 4, v16")
e("v_add_u32 v9, %d, v9" % (9216-1024))
e("v_add_u32 v10, %d, v8" % (2*(9216-1024)))
e("v_add_u32 v11, %d, v9" % (2*(9216-1024)))
e("s_mul_i32 s37, s31, 36864")
e("s_sub_u32 s38, 36864, s37")
e("s_lshl_b32 s39, s3, 13")
e("s_add_u32 s49, s39, %d" % (3*XST))
def issueX():
    if OPT['nox']:
        return
    e("s_mov_b32 m0, s39")
    e("s_add_u32 s48, s39, 4096")
    for i in range(4):
        e("buffer_load_dwordx4 v%d, s[4:7], s37 offen offset:%d lds" % (vX[i], i*1024))
    e("s_mov_b32 m0, s48")
    e("s_add_u32 s39, s39, %d" % XST)
    for i in range(4):
        e("buffer_load_dwordx4 v%d, s[4:7], s38 offen offset:%d lds" % (vX[i], i*1024))
    e("s_add_u32 s37, s37, 128")
    e("s_add_u32 s38, s38, 128")
    e("s_cmp_eq_u32 s39, s49")
    e("s_cselect_b32 s48, %d, 0" % (3*XST))
    e("s_sub_u32 s39, s39, s48")
issueX()
issueQ(1)
e("v_mov_b32 v%d, 0x%08x" % (vTL[0], TL[0]))
e("v_mov_b32 v%d, 0x%08x" % (vTL[1], TL[2]))
e("v_mov_b32 v%d, 0x%08x" % (vTH[0], TH[0]))
e("v_mov_b32 v%d, 0x%08x" % (vTH[1], TH[2]))
e("s_mov_b32 s%d, 0x%08x" % (sTL[0], TL[1]))
e("s_mov_b32 s%d, 0x%08x" % (sTL[1], TL[3]))
e("s_mov_b32 s%d, 0x%08x" % (sTH[0], TH[1]))
e("s_mov_b32 s%d, 0x%08x" % (sTH[1], TH[3]))
e("s_mov_b32 s%d, 0x05010400" % sSel0)
e("s_mov_b32 s%d, 0x07030602" % sSel1)
e("s_mov_b32 s%d, 0x08080808" % sX8)
e("s_mov_b32 s50, 0")
nq = 0 if OPT['noq'] else 16
nx = 0 if OPT['nox'] else 8
def prod_iter(b):
    issueX()
    e("s_waitcnt vmcnt(%d)" % (nx+nq+nx))
    for t in range(5):
        for hf in range(2):
            q = [(Q[b]+4*(4*hf+i)+t) if t < 4 else (Q[b]+32+4*hf+i) for i in range(4)]
            s = TMP + 2*t + hf
            e("v_lshl_or_b32 v%d, v%d, 8, v%d" % (q[0], q[1], q[0]))
            e("v_lshl_or_b32 v%d, v%d, 8, v%d" % (q[2], q[3], q[2]))
            e("v_lshl_or_b32 v%d, v%d, 16, v%d" % (s, q[2], q[0]))
    issueQ(b)
    for t in range(5):
        o = OUTR + 4*(t % 4)
        for hf in range(2):
            s = TMP + 2*t + hf
            a = TMP + 10 + 5*hf
            if OPT['nodeq']:
                continue
            e("v_xor_b32 v%d, s%d, v%d" % (a, sX8, s))
            e("v_perm_b32 v%d, s%d, v%d, v%d" % (a+1, sTL[0], vTL[0], s))
            e("v_perm_b32 v%d, s%d, v%d, v%d" % (a+2, sTH[0], vTH[0], s))
            e("v_perm_b32 v%d, s%d, v%d, v%d" % (a+3, sTL[1], vTL[1], a))
            e("v_perm_b32 v%d, s%d, v%d, v%d" % (a+4, sTH[1], vTH[1], a))
            e("v_xor_b32 v%d, v%d, v%d" % (a+1, a+1, a+3))
            e("v_xor_b32 v%d, v%d, v%d" % (a+2, a+2, a+4))
            e("v_perm_b32 v%d, v%d, v%d, s%d" % (o+2*hf, a+2, a+1, sSel0))
            e("v_perm_b32 v%d, v%d, v%d, s%d" % (o+2*hf+1, a+2, a+1, sSel1))
        e("ds_write_b128 v%d, v[%d:%d] offset:%d" % (vW, o, o+3, b*WST + t*512))
    e("s_waitcnt vmcnt(%d) lgkmcnt(0)" % (nq+nx+nq))
    e("s_barrier")
lab("L_ploop")
e("s_cmp_eq_u32 s50, 8")
e("s_cselect_b32 s6, 0, s6")
prod_iter(0)
e("s_cmp_eq_u32 s50, 8")
e("s_cbranch_scc1 L_end")
prod_iter(1)
e("s_add_u32 s50, s50, 2")
e("s_branch L_ploop")

lab("L_consumer")
e("s_setprio 2")
vXa = [4, 5, 6, 7]; vWa = 8
vSc = 10
FR = [20, 48]
ACC = 80
e("s_lshl_b32 s34, s3, 6")
e("v_add_u32 v9, s34, v2")
e("v_lshrrev_b32 v4, 1, v2")
e("v_and_b32 v4, 7, v4")
e("v_xor_b32 v4, v4, v3")
e("v_lshlrev_b32 v4, 4, v4")
e("v_lshl_add_u32 v4, v9, 7, v4")
e("v_xor_b32 v5, 32, v4")
e("v_xor_b32 v6, 64, v4")
e("v_xor_b32 v7, 96, v4")
e("v_mul_u32_u24 v8, 2560, v3")
e("v_lshl_add_u32 v8, v2, 4, v8")
e("v_add_u32 v8, %d, v8" % WBASE)
e("s_waitcnt lgkmcnt(0)")
e("s_mov_b32 s16, s24")
e("s_mov_b32 s17, s25")
e("s_mov_b32 s12, s26")
e("s_mov_b32 s13, s27")
e("s_lshl_b32 s36, s32, 1")
e("v_lshlrev_b32 v16, 3, v2")
e("v_add_u32 v19, s36, v16")
e("buffer_load_dwordx2 v[16:17], v19, s[16:19], 0 offen")
e("s_lshl_b32 s36, s33, 1")
e("v_lshlrev_b32 v15, 1, v2")
e("v_add_u32 v15, s36, v15")
e("buffer_load_ushort v18, v15, s[16:19], 0 offen")
for i in range(144):
    e("v_mov_b32 v%d, 0" % (ACC+i))
e("s_mov_b32 s40, 0")
e("s_mov_b32 s41, %d" % WST)
e("s_mov_b32 s50, 0")
e("s_barrier")
def reads(fs, ks):
    r = []
    f = FR[fs]
    r.append("ds_read_b128 v[%d:%d], v%d" % (f, f+3, vXa[ks]))
    r.append("ds_read_b128 v[%d:%d], v%d offset:%d" % (f+8, f+11, vWa, ks*5120))
    r.append("ds_read_b128 v[%d:%d], v%d offset:4096" % (f+4, f+7, vXa[ks]))
    for t in range(1, 5):
        r.append("ds_read_b128 v[%d:%d], v%d offset:%d" % (f+8+4*t, f+11+4*t, vWa, ks*5120+t*512))
    return r
def mfmas(fs):
    f = FR[fs]
    m = []
    for t in range(4):
        for rt in range(2):
            a = ACC + 16*(rt*4+t)
            m.append("v_mfma_f32_32x32x16_bf16 v[%d:%d], v[%d:%d], v[%d:%d], v[%d:%d]" % (a, a+15, f+4*rt, f+4*rt+3, f+8+4*t, f+11+4*t, a, a+15))
    a = ACC + 128
    m.append("v_mfma_f32_32x32x16_bf16 v[%d:%d], v[%d:%d], v[%d:%d], v[%d:%d]" % (a, a+15, f, f+3, f+24, f+27, a, a+15))
    if OPT['nomfma']:
        m = ["s_nop 0"]*9
    return m
for x in reads(0, 0): e(x)
lab("L_cloop")
for ks in range(4):
    fs = ks & 1
    m = mfmas(fs)
    e("s_waitcnt lgkmcnt(0)")
    if ks < 3:
        r = reads(fs ^ 1, ks+1)
        for i in range(9):
            e(m[i])
            for x in r[2*i:2*i+2]: e(x)
            if ks == 0 and i == 5:
                e("s_add_u32 s40, s40, 1")
                e("s_cmp_eq_u32 s40, 3")
                e("s_cselect_b32 s42, %d, %d" % (-2*XST, XST) if False else "s_cselect_b32 s42, s43, s44")
                e("s_cselect_b32 s40, 0, s40")
            if ks == 2 and i == 5:
                for k in range(4):
                    e("v_add_u32 v%d, s42, v%d" % (vXa[k], vXa[k]))
            if ks == 2 and i == 6:
                e("v_add_u32 v%d, s41, v%d" % (vWa, vWa))
                e("s_sub_u32 s41, 0, s41")
                e("s_add_u32 s50, s50, 1")
    else:
        r = reads(fs ^ 1, 0)
        e(m[0])
        e("s_barrier")
        for i in range(1, 9):
            for x in r[2*(i-1):2*(i-1)+2]: e(x)
            e(m[i])
e("s_cmp_lt_u32 s50, 9")
e("s_cbranch_scc1 L_cloop")
idx = out.index("    s_mov_b32 s40, 0")
out.insert(idx, "    s_mov_b32 s43, %d" % (-2*XST))
out.insert(idx, "    s_mov_b32 s44, %d" % XST)
e("s_waitcnt vmcnt(0) lgkmcnt(0)")
e("v_lshlrev_b32 v10, 16, v16")
e("v_and_b32 v11, 0xffff0000, v16")
e("v_lshlrev_b32 v12, 16, v17")
e("v_and_b32 v13, 0xffff0000, v17")
e("v_lshlrev_b32 v14, 16, v18")
e("s_add_u32 s34, s34, s30")
e("v_lshl_add_u32 v9, v3, 2, s34")
e("s_mov_b32 s35, 9216")
e("v_mul_lo_u32 v9, v9, s35")
e("v_add_u32 v19, v9, v19")
e("v_add_u32 v15, v9, v15")
e("s_mul_i32 s37, s31, %d" % (32*9216))
e("s_sub_u32 s38, %d, s37" % (32*9216))
e("s_nop 7")
P = 20
cnt = 0
for rt in range(2):
    for r in range(16):
        row = (r & 3) + 8*(r >> 2)
        p = P + 2*(cnt % 8); cnt += 1
        a = [ACC + 16*(rt*4+t) + r for t in range(4)]
        for t in range(4):
            e("v_mul_f32 v%d, v%d, v%d" % (a[t], a[t], vSc+t))
        e("v_cvt_pk_bf16_f32 v%d, v%d, v%d" % (p, a[0], a[1]))
        e("v_cvt_pk_bf16_f32 v%d, v%d, v%d" % (p+1, a[2], a[3]))
        e("s_add_u32 s39, s%d, %d" % (37+rt, row*9216))
        if not OPT['nostore']:
            e("buffer_store_dwordx2 v[%d:%d], v19, s[12:15], s39 offen" % (p, p+1))
for r in range(0, 16, 2):
    a = ACC + 128 + r
    p = 40 + r//2
    e("v_mul_f32 v%d, v%d, v14" % (a, a))
    e("v_mul_f32 v%d, v%d, v14" % (a+1, a+1))
    e("v_cvt_pk_bf16_f32 v%d, v%d, v%d" % (p, a, a+1))
    row = (r & 3) + 8*(r >> 2)
    e("s_add_u32 s39, s37, %d" % (row*9216))
    if not OPT['nostore'] or r == 0:
        e("buffer_store_short v%d, v15, s[12:15], s39 offen" % p)
    e("s_add_u32 s39, s37, %d" % ((row+1)*9216))
    if not OPT['nostore']:
        e("buffer_store_short_d16_hi v%d, v15, s[12:15], s39 offen" % p)
lab("L_end")
e("s_endpgm")
out.append(f""".section .rodata,"a"
.p2align 6
.amdhsa_kernel {NAME}_kernel
  .amdhsa_next_free_vgpr 224
  .amdhsa_next_free_sgpr 64
  .amdhsa_accum_offset 224
  .amdhsa_group_segment_fixed_size 0
  .amdhsa_kernarg_size 48
  .amdhsa_user_sgpr_count 2
  .amdhsa_user_sgpr_kernarg_segment_ptr 1
  .amdhsa_system_sgpr_workgroup_id_x 1
  .amdhsa_float_denorm_mode_32 3
.end_amdhsa_kernel""")
open(sys.argv[1], "w").write("\n".join(out) + "\n")
```
